```python
import torch

def _softmax(x, axis=-1):
    return torch.softmax(x, dim=axis)
def _gelu(x):
    return torch.nn.functional.gelu(x, approximate="tanh")
def _silu(x):
    return torch.nn.functional.silu(x)
def _sigmoid(x):
    return torch.sigmoid(x)
def _layernorm(x, axis=-1, eps=1e-5):
    m = x.mean(dim=axis, keepdim=True)
    v = x.var(dim=axis, keepdim=True, unbiased=False)
    return (x - m) / torch.sqrt(v + eps)
def _scatter_add(tgt, idx, src, axis=0):
    return tgt.clone().index_add_(axis, idx, src)
def _segment_sum(src, seg, n):
    out = torch.zeros((n,) + src.shape[1:], dtype=src.dtype)
    return out.index_add_(0, seg, src)
def _pad(x, pw):
    flat = tuple(v for pair in reversed(pw) for v in pair)
    return torch.nn.functional.pad(x, flat)

kernel_name = 'standalone__window_attn_swin__vision'

def setup_inputs():

    _w = (lambda a: (lambda t: t.to(torch.bfloat16) if t.is_floating_point() else t)(torch.as_tensor(a)))
    H = W = 224
    C = 192
    ws = 8
    nh = 4
    shift = ws // 2
    coords = torch.stack(torch.meshgrid(torch.arange(ws), torch.arange(ws), indexing='ij'), 0).reshape(2, -1)
    rel = coords[:, :, None] - coords[:, None, :]
    rel[0] += ws - 1
    rel[1] += ws - 1
    rel[0] *= 2 * ws - 1
    rp_idx = rel.sum(0).to(torch.int64)
    img_mask = torch.zeros((1, H, W, 1), dtype=float)
    cnt = 0
    for hs in (slice(0, H - ws), slice(H - ws, H - shift), slice(H - shift, H)):
        for vs in (slice(0, W - ws), slice(W - ws, W - shift), slice(W - shift, W)):
            img_mask[:, hs, vs, :] = cnt
            cnt += 1
    mw = img_mask.reshape(1, H // ws, ws, W // ws, ws, 1).permute(0, 1, 3, 2, 4, 5).reshape(-1, ws * ws)
    am = mw[:, :, None] - mw[:, None, :]
    attn_mask = torch.where(am != 0, -100.0, 0.0).to(float)
    return {
        "x": _w((lambda *s: torch.randn(*s, dtype=torch.bfloat16) * 1.6)(1, H, W, C)),
        "wqkv": _w((lambda *s: torch.randn(*s, dtype=torch.bfloat16) * 1.6)(C, 3 * C) * 0.02),
        "wo": _w((lambda *s: torch.randn(*s, dtype=torch.bfloat16) * 0.05)(C, C) * 0.02),
        "rpb": _w((lambda *s: torch.randn(*s, dtype=torch.bfloat16) * 0.2)((2 * ws - 1) * (2 * ws - 1), nh)),
        "rp_idx": _w(rp_idx),
        "attn_mask": _w(attn_mask),
    }

def reference(x, wqkv, wo, rpb, rp_idx, attn_mask):
    B, H, W, C = x.shape
    N = rp_idx.shape[0]
    ws = int(round(N ** 0.5))
    nh = rpb.shape[-1]
    hd = C // nh
    shift = ws // 2
    xs = torch.roll(x, (-shift, -shift), (1, 2))
    nWh = H // ws
    nWw = W // ws
    xw = (lambda x, *d: x.permute(*d))(xs.reshape(B, nWh, ws, nWw, ws, C), 0, 1, 3, 2, 4, 5).reshape(B * nWh * nWw, N, C)
    qkv = (lambda x, *d: x.permute(*d))(torch.einsum('wnc,cd->wnd', xw, wqkv).reshape(-1, N, 3, nh, hd), 2, 0, 3, 1, 4)
    q, k, v = qkv[0], qkv[1], qkv[2]
    attn = torch.einsum('whid,whjd->whij', q, k) * (hd ** -0.5)
    bias = (lambda x, *d: x.permute(*d))(rpb[rp_idx.reshape(-1)].reshape(N, N, nh), 2, 0, 1)
    attn = attn + bias[None, :, :, :]
    attn = (attn.reshape(B, nWh * nWw, nh, N, N) + attn_mask[None, :, None, :, :]).reshape(-1, nh, N, N)
    attn = _softmax(attn, axis=-1)
    out = (lambda x, *d: x.permute(*d))(torch.einsum('whij,whjd->whid', attn, v), 0, 2, 1, 3).reshape(-1, N, C)
    out = torch.einsum('wnc,cd->wnd', out, wo)
    out = (lambda x, *d: x.permute(*d))(out.reshape(B, nWh, nWw, ws, ws, C), 0, 1, 3, 2, 4, 5).reshape(B, H, W, C)
    return torch.roll(out, (shift, shift), (1, 2))
```

```python
import heapq

M32, M16, VALU, TRANS, SWAP, SALU, DSR, DSW, VLD, DMA, VST, BAR, SMEM, NOP, WAIT, FENCE = (
    'M32', 'M16', 'VALU', 'TRANS', 'SWAP', 'SALU', 'DSR', 'DSW', 'VLD', 'DMA', 'VST', 'BAR', 'SMEM', 'NOP', 'WAIT', 'FENCE')
MFMA = (M32, M16)
VAL = (VALU, TRANS, SWAP)
DS = (DSR, DSW)
VM = (VLD, DMA, VST)
SCAL = (SALU, BAR, SMEM, NOP, WAIT, FENCE)


def R(f, lo, n=1):
    return [(f, lo + i) for i in range(n)]


def rs(f, lo, n):
    return f"{f}{lo}" if n == 1 else f"{f}[{lo}:{lo+n-1}]"


class Inst:
    __slots__ = ('text', 'kind', 'rd', 'wr', 'tok', 'size', 'flex', 'occ', 'lat', 'idx', 'preds', 'succs', 'need',
                 'dl', 't', 'done', 'pos', 'st', 'srcc', 'wide', 'tag', 'nst', 'prio')

    def __init__(self, text, kind, rd=(), wr=(), tok=(), size=8, flex=False, occ=0, lat=0, srcc=(), wide=False, tag=''):
        self.text = text
        self.kind = kind
        self.rd = list(rd)
        self.wr = list(wr)
        self.tok = list(tok)
        self.size = size
        self.flex = flex
        self.occ = occ
        self.lat = lat
        self.srcc = list(srcc)
        self.wide = wide
        self.tag = tag
        self.preds = {}
        self.succs = []
        self.need = set()
        self.nst = 1
        self.prio = 0


class Prog:
    def __init__(self):
        self.ins = []

    def add(self, i):
        i.idx = len(self.ins)
        self.ins.append(i)
        return i

    def mfma32(self, d, a, b, c=None, tag=''):
        cs = '0' if c is None else rs('v', d, 16)
        rd = R(a[0], a[1], 4) + R(b[0], b[1], 4)
        srcc = [] if c is None else R('v', d, 16)
        return self.add(Inst(f"v_mfma_f32_32x32x16_bf16 {rs('v', d, 16)}, {rs(a[0], a[1], 4)}, {rs(b[0], b[1], 4)}, {cs}",
                             M32, rd + srcc, R('v', d, 16), srcc=srcc, tag=tag))

    def mfma16(self, d, a, b, c=None, tag=''):
        cs = '0' if c is None else rs('v', d, 4)
        rd = R(a[0], a[1], 4) + R(b[0], b[1], 4)
        srcc = [] if c is None else R('v', d, 4)
        return self.add(Inst(f"v_mfma_f32_16x16x32_bf16 {rs('v', d, 4)}, {rs(a[0], a[1], 4)}, {rs(b[0], b[1], 4)}, {cs}",
                             M16, rd + srcc, R('v', d, 4), srcc=srcc, tag=tag))

    @staticmethod
    def _opnd(x):
        if isinstance(x, tuple):
            return f"{x[0]}{x[1]}", [x], False
        if isinstance(x, str):
            if x.startswith('-v') or x.startswith('-s'):
                return x, [(x[1], int(x[2:]))], False
            if x in ('vcc', 'm0', 'exec'):
                return x, [x], False
            return x, [], False
        if isinstance(x, int):
            if -16 <= x <= 64:
                return str(x), [], False
            return hex(x & 0xffffffff), [], True
        raise ValueError(x)

    def valu(self, op, d, *src, kind=VALU, vop3=False, rmw=False, extra_rd=(), extra_wr=(), tag=''):
        texts, rd, lit = [], [], False
        for s in src:
            t, r, l = self._opnd(s)
            texts.append(t)
            rd += r
            lit |= l
        if rmw:
            rd.append(d)
        dt = f"{d[0]}{d[1]}" if isinstance(d, tuple) else d
        flex = False
        if vop3:
            assert not lit, (op, src)
            size = 8
        elif lit:
            size = 8
        else:
            size = 4
            flex = True
            if len(src) >= 2 and not (isinstance(src[1], tuple) and src[1][0] == 'v'):
                size, flex = 8, False
                op = op + '_e64'
            elif any(isinstance(s, str) and s.startswith('-') and s[1] in 'vs' for s in src):
                size, flex = 8, False
                op = op + '_e64'
        return self.add(Inst(f"{op} {dt}, " + ", ".join(texts), kind, rd + list(extra_rd), [d] + list(extra_wr),
                             size=size, flex=flex, tag=tag))

    def swap16(self, a, b, tag=''):
        return self.add(Inst(f"v_permlane16_swap_b32 v{a}, v{b}", SWAP, [('v', a), ('v', b)], [('v', a), ('v', b)],
                             size=4, flex=True, tag=tag))

    def swap32(self, a, b, tag=''):
        return self.add(Inst(f"v_permlane32_swap_b32 v{a}, v{b}", SWAP, [('v', a), ('v', b)], [('v', a), ('v', b)],
                             size=4, flex=True, tag=tag))

    def cvt(self, d, lo, hi, tag=''):
        return self.valu('v_cvt_pk_bf16_f32', ('v', d), ('v', lo), ('v', hi), vop3=True, tag=tag)

    def salu(self, op, d, *src, scc_w=True, scc_r=False, tag=''):
        texts, rd, lit = [], [], False
        for s in src:
            t, r, l = self._opnd(s)
            texts.append(t)
            rd += r
            lit |= l
        wr = []
        if d is not None:
            dt = f"{d[0]}{d[1]}" if isinstance(d, tuple) else d
            texts = [dt] + texts
            wr.append(d)
        if scc_w:
            wr.append('scc')
        if scc_r:
            rd.append('scc')
        return self.add(Inst(f"{op} " + ", ".join(texts), SALU, rd, wr, size=8 if lit else 4, tag=tag))

    def smov(self, d, s, tag=''):
        return self.salu('s_mov_b32', d, s, scc_w=False, tag=tag)

    def dsr(self, op, dst, n, addr, off, tok, occ, tag='', lat=None):
        assert 0 <= off < 65536, off
        o = f" offset:{off}" if off else ""
        return self.add(Inst(f"{op} {rs(dst[0], dst[1], n)}, v{addr}{o}", DSR, [('v', addr)], R(dst[0], dst[1], n),
                             tok=[(t, 'r') for t in tok], occ=occ, lat=lat if lat is not None else P['ds_lat'], tag=tag))

    def ds_b128(self, dst, addr, off, tok, tag=''):
        return self.dsr('ds_read_b128', dst, 4, addr, off, tok, 16, tag)

    def ds_tr(self, dst, addr, off, tok, tag=''):
        return self.dsr('ds_read_b64_tr_b16', dst, 2, addr, off, tok, 9, tag)

    def dsw(self, op, addr, src, n, off, tok, occ, tag=''):
        assert 0 <= off < 65536, off
        o = f" offset:{off}" if off else ""
        return self.add(Inst(f"{op} v{addr}, {rs('v', src, n)}{o}", DSW, [('v', addr)] + R('v', src, n), [],
                             tok=[(t, 'w') for t in tok], occ=occ, lat=P['dsw_lat'], tag=tag))

    def dma(self, voff, srd, soff, tok, lat, flags='', tag=''):
        so, r, _ = self._opnd(soff)
        return self.add(Inst(f"buffer_load_dwordx4 v{voff}, s[{srd}:{srd+3}], {so} offen lds{flags}", DMA,
                             [('v', voff), 'm0'] + R('s', srd, 4) + r, [], tok=[(t, 'w') for t in tok], occ=64, lat=lat, tag=tag))

    def vld(self, op, dst, n, voff, srd, soff, off, lat, flags='', tok=(), occ=64, tag=''):
        so, r, _ = self._opnd(soff)
        o = f" offset:{off}" if off else ""
        return self.add(Inst(f"{op} {rs(dst[0], dst[1], n)}, v{voff}, s[{srd}:{srd+3}], {so} offen{o}{flags}", VLD,
                             [('v', voff)] + R('s', srd, 4) + r, R(dst[0], dst[1], n), tok=[(t, 'r') for t in tok], occ=occ,
                             lat=lat, tag=tag))

    def vst(self, op, src, n, voff, srd, soff, off, flags='', tok=(), occ=128, tag=''):
        so, r, _ = self._opnd(soff)
        o = f" offset:{off}" if off else ""
        return self.add(Inst(f"{op} {rs('v', src, n)}, v{voff}, s[{srd}:{srd+3}], {so} offen{o}{flags}", VST,
                             [('v', voff)] + R('v', src, n) + R('s', srd, 4) + r, [], tok=[(t, 'w') for t in tok], occ=occ,
                             lat=1000, wide=(n >= 3), tag=tag))

    def barrier(self, toks, tag=''):
        return self.add(Inst("s_barrier", BAR, [], [], tok=[(t, 'x') for t in toks] + [('BARORD', 'x')], size=4, tag=tag))

    def raw(self, text, kind, rd=(), wr=(), tok=(), size=4, lat=0, tag=''):
        return self.add(Inst(text, kind, rd, wr, tok=tok, size=size, lat=lat, tag=tag))


P = dict(ds_lat=112, dsw_lat=96, ds_slack=40, vm_cap=14)


def is_async(k):
    return k in (DSR, DSW, VLD, DMA, VST, SMEM)


def hazard_states(p, c, reg, typ):
    pk, ck = p.kind, c.kind
    isv = isinstance(reg, tuple) and reg[0] in 'va'
    iss = (isinstance(reg, tuple) and reg[0] == 's') or reg == 'vcc'
    if pk in MFMA and isv:
        n8 = pk == M32
        if typ in ('RAW', 'WAW'):
            if ck in MFMA:
                if typ == 'RAW' and reg in c.srcc and c.kind == pk and c.srcc == p.wr and reg not in c.rd[:8]:
                    return 0
                if typ == 'WAW' and c.kind == pk and c.wr == p.wr and c.srcc == p.wr:
                    return 0
                if typ == 'RAW' and reg in c.rd[:8]:
                    return 12 if n8 else 8
                return 12 if n8 else 8
            return 12 if n8 else 8
        if typ == 'WAR' and reg in p.srcc and ck in VAL:
            return 7 if n8 else 3
        return 0
    if pk in VAL:
        if typ == 'RAW' and isv:
            if ck in MFMA:
                return 2
            if ck == SWAP:
                return 2
            if 'readfirstlane' in c.text or 'readlane' in c.text:
                return 1
            if pk == TRANS and ck in VAL:
                return 1
            if pk == TRANS:
                return 1
        if typ == 'RAW' and iss:
            if ck in VM:
                return 5
            if ck in VAL:
                return 2
            if ck == SALU or ck == SMEM:
                return 2
        return 0
    if pk == SALU and reg == 'm0' and typ == 'RAW' and ck == DMA:
        return 1
    if pk == VST and p.wide and typ == 'WAR' and isv and reg != p.rd[0]:
        return 2
    return 0


def edge_latency(p, c, typ, states):
    pk = p.kind
    if pk in MFMA:
        if states >= 8:
            return 64 if pk == M32 else 40
        return 4 * (states + 1)
    if pk == TRANS and typ == 'RAW':
        return 12
    return 4 * (states + 1)


def build_deps(ins, keep_order_kinds=True):
    lastw = {}
    readers = {}
    tokst = {}

    def add_edge(p, c, lat, st, need=False):
        if p is c:
            return
        o = c.preds.get(p.idx)
        if o is None:
            c.preds[p.idx] = (lat, st)
            p.succs.append(c.idx)
        else:
            c.preds[p.idx] = (max(o[0], lat), max(o[1], st))
        if need:
            c.need.add(p.idx)

    last_m = None
    last_vm = None
    last_fence = None
    since_fence = []
    for c in ins:
        if c.kind == FENCE:
            for p in since_fence:
                add_edge(p, c, 4, 0)
            since_fence = []
        if last_fence is not None:
            add_edge(last_fence, c, 0, 0)
        if c.kind == FENCE:
            last_fence = c
        else:
            since_fence.append(c)
        for r in c.rd:
            p = lastw.get(r)
            if p is not None:
                if p.kind in (DSR, VLD, SMEM):
                    add_edge(p, c, p.lat + (P['ds_slack'] if p.kind == DSR else 0), 0, True)
                else:
                    st = hazard_states(p, c, r, 'RAW')
                    add_edge(p, c, edge_latency(p, c, 'RAW', st), st)
        for r in c.wr:
            p = lastw.get(r)
            if p is not None:
                if p.kind in (DSR, VLD, SMEM):
                    if p.kind == DSR and c.kind == DSR:
                        add_edge(p, c, 4, 0)
                    else:
                        add_edge(p, c, p.lat, 0, True)
                else:
                    st = hazard_states(p, c, r, 'WAW')
                    add_edge(p, c, edge_latency(p, c, 'WAW', st), st)
            for p in readers.get(r, ()):
                st = hazard_states(p, c, r, 'WAR')
                add_edge(p, c, edge_latency(p, c, 'WAR', st), st)
        for r in c.rd:
            readers.setdefault(r, []).append(c)
        for r in c.wr:
            lastw[r] = c
            readers[r] = []
        for (t, m) in c.tok:
            s = tokst.get(t)
            if s is None:
                tokst[t] = [m, [c], []]
                continue
            if s[0] == m and m != 'x':
                deps = s[2]
                s[1].append(c)
            else:
                deps = s[1]
                s[2] = s[1]
                s[1] = [c]
                s[0] = m
            for p in deps:
                if is_async(p.kind) and not (p.kind in DS and c.kind in DS):
                    add_edge(p, c, p.lat, 0, True)
                else:
                    add_edge(p, c, 4, 0)
        if c.kind in MFMA:
            if last_m is not None:
                add_edge(last_m, c, 4, 0)
            last_m = c
        if c.kind in VM:
            if last_vm is not None:
                add_edge(last_vm, c, 4, 0)
            last_vm = c


def cost(i):
    if i.kind in (TRANS, SWAP):
        return 8
    if i.kind in MFMA:
        return 8
    if i.kind == FENCE:
        return 0
    return 4


def dur(i):
    return 32 if i.kind == M32 else 16


class Model:
    def __init__(self):
        self.t_s = 0
        self.t_v = 0
        self.last_valu = -100
        self.pipe = 0
        self.lds = 0
        self.vm = 0
        self.vmq = []
        self.ldsq = []

    def earliest(self, i):
        k = i.kind
        if k in SCAL:
            return self.t_s
        t = self.t_v
        if k in MFMA:
            return max(t, self.pipe)
        if k in DS:
            t = max(t, self.last_valu + 12, self.lds - 32)
            if len(self.ldsq) >= 14:
                t = max(t, self.ldsq[-14])
            return t
        if k in VM:
            t = max(t, self.last_valu + 12, self.vm)
            if len(self.vmq) >= P['vm_cap']:
                t = max(t, self.vmq[-P['vm_cap']])
            return t
        return t

    def issue(self, i, t):
        k = i.kind
        i.t = t
        i.done = t
        if k in MFMA:
            self.t_s = t + 4
            self.t_v = t + 8
            self.pipe = t + dur(i)
        elif k in (TRANS, SWAP):
            self.t_s = self.t_v = t + 8
            self.last_valu = t + 4
        elif k == VALU:
            self.t_s = self.t_v = t + 4
            self.last_valu = t
        elif k == NOP:
            self.t_s = t + 4 * i.nst
            self.t_v = max(self.t_v, self.t_s)
        elif k == FENCE:
            pass
        else:
            self.t_s = t + 4
            self.t_v = max(self.t_v, t + 4)
        if k in DS:
            st = max(t, self.lds)
            self.lds = st + i.occ
            i.done = max(st + i.lat, self.ldsq[-1] if self.ldsq else 0)
            self.ldsq.append(i.done)
        elif k in VM:
            self.vm = t + i.occ
            i.done = max(t + i.lat, (self.vmq[-1] + i.occ) if self.vmq else 0)
            self.vmq.append(i.done)
        elif k == SMEM:
            i.done = t + i.lat


def mknop(n):
    i = Inst(f"s_nop {n-1}", NOP, size=4)
    i.nst = n
    i.idx = -1
    return i


def schedule(ins, reorder=True, verbose=False):
    n = len(ins)
    build_deps(ins)
    T = 0
    INF = 10 ** 9
    for i in ins:
        i.dl = INF
    mt = {}
    for i in ins:
        if i.kind in MFMA:
            mt[i.idx] = T
            T += dur(i)
    END = T + 2000
    for i in reversed(ins):
        d = mt.get(i.idx, END)
        for s in i.succs:
            sc = ins[s]
            d = min(d, sc.dl - max(sc.preds[i.idx][0], 4))
        i.dl = d - i.prio
    npred = [len(i.preds) for i in ins]
    ready = [i.idx for i in ins if npred[i.idx] == 0]
    out = []
    m = Model()
    state = 0
    done = 0

    def ready_time(i):
        t = 0
        st = 0
        for p, (lat, s) in i.preds.items():
            pi = ins[p]
            if p in i.need:
                t = max(t, pi.done + (P['ds_slack'] if pi.kind == DSR and i.kind in MFMA else 0))
            else:
                t = max(t, pi.t + lat)
            if s:
                st = max(st, pi.st + 1 + s)
        return t, st

    rt = {}
    for r in ready:
        rt[r] = ready_time(ins[r])

    def emit(i, t):
        nonlocal state, done
        m.issue(i, t)
        i.st = state
        state += i.nst if i.kind != FENCE else 0
        out.append(i)
        if i.idx >= 0:
            done += 1
            ready.remove(i.idx)
            for s in i.succs:
                npred[s] -= 1
                if npred[s] == 0:
                    ready.append(s)
                    rt[s] = ready_time(ins[s])

    nxt = 0
    while done < n:
        if not reorder:
            i = ins[nxt]
            nxt += 1
            t, st = rt[i.idx]
            if st > state:
                k = st - state
                while k > 0:
                    q = min(k, 16)
                    emit(mknop(q), m.t_s)
                    k -= q
            emit(i, max(t, m.earliest(i)))
            continue
        cands = []
        for r in ready:
            i = ins[r]
            t, st = rt[r]
            e = max(t, m.earliest(i))
            deficit = max(0, st - state)
            if deficit:
                e = max(e, m.t_s + 4 * deficit)
            cands.append((e, deficit, i))
        mf = [c for c in cands if c[2].kind in MFMA]
        fl = [c for c in cands if c[2].kind not in MFMA]
        now_v = m.t_v
        tm = mf[0][0] if mf else INF
        best = None
        ok = [c for c in fl if c[1] == 0 and c[0] + cost(c[2]) <= tm or (c[1] == 0 and c[2].kind == FENCE)]
        if mf and mf[0][1] > 0:
            pass
        if ok:
            tmin = min(c[0] for c in ok)
            lim = max(tmin, now_v)
            now = [c for c in ok if c[0] <= lim]
            sc = [c for c in now if c[2].kind in SCAL and c[0] + 4 <= now_v]
            mem = [c for c in now if c[2].kind in DS or c[2].kind in VM]
            if sc:
                best = min(sc, key=lambda c: (c[2].dl, c[2].idx))
            else:
                best = min(now, key=lambda c: (c[2].dl, c[2].idx))
                if mem and best[2].kind in VAL:
                    bm = min(mem, key=lambda c: (c[2].dl, c[2].idx))
                    if bm[2].dl <= best[2].dl + P.get('mem_pref', 400):
                        best = bm
                late = [c for c in ok if c[0] > lim and (c[2].kind in DS or c[2].kind in VM) and c[0] <= lim + 12
                        and c[2].dl + 64 < best[2].dl and tm - lim > 64]
                if late:
                    best = min(late, key=lambda c: (c[2].dl, c[2].idx))
            emit(best[2], best[0])
            continue
        blocked = [c for c in cands if c[1] > 0]
        if mf and mf[0][1] == 0:
            idle = (tm - m.t_s) // 4
            if blocked and idle >= 1:
                b = min(blocked, key=lambda c: (c[2].dl, c[2].idx))
                k = min(idle, b[1], 16)
                k = min(k, max(b[1] - 1, 0)) if b[0] >= tm else k
                if k >= 1:
                    emit(mknop(k), m.t_s)
                    continue
            emit(mf[0][2], tm)
            continue
        b = min(blocked, key=lambda c: (c[0], c[2].dl, c[2].idx))
        emit(mknop(min(b[1], 16)), m.t_s)
    return out, m


def insert_waits(seq, ins):
    cls = {}
    ordn = {}
    cnt = {'l': 0, 'v': 0}
    before = []
    for p, i in enumerate(seq):
        before.append((cnt['l'], cnt['v']))
        i.pos = p
        if i.kind in DS:
            cls[i.idx] = 'l'
            ordn[i.idx] = cnt['l']
            cnt['l'] += 1
        elif i.kind in VM:
            cls[i.idx] = 'v'
            ordn[i.idx] = cnt['v']
            cnt['v'] += 1
        elif i.kind == SMEM:
            cls[i.idx] = 's'
    lops = [i for i in seq if i.kind in DS]
    vops = [i for i in seq if i.kind in VM]
    ops = {'l': lops, 'v': vops}
    mx = {'l': 15, 'v': 63}
    guaranteed = {'l': 0, 'v': 0}
    waits = {}
    smem_pending = []
    last_wait_pos = 0
    for p, i in enumerate(seq):
        if i.kind == SMEM:
            smem_pending.append(i.idx)
        needs = {'l': 0, 'v': 0}
        for q in i.need:
            c = cls[q]
            if c == 's':
                if q in smem_pending:
                    w = waits.setdefault(p, {})
                    w['l'] = 0
                    guaranteed['l'] = before[p][0]
                    smem_pending = []
                    last_wait_pos = p
                continue
            needs[c] = max(needs[c], ordn[q] + 1)
        for c in ('l', 'v'):
            if needs[c] <= guaranteed[c]:
                continue
            if c == 'l' and smem_pending:
                w = waits.setdefault(p, {})
                w['l'] = 0
                guaranteed['l'] = before[p][0]
                smem_pending = []
                last_wait_pos = p
                continue
            op = ops[c][needs[c] - 1]
            pos = p
            q = p
            while q > max(op.pos + 1, p - 12, last_wait_pos):
                prev = seq[q - 1]
                if q in waits and (prev.t + 4 >= op.done or q == p):
                    pos = q
                    break
                if prev.kind in MFMA and (seq[q].kind not in SCAL) and prev.t + 4 >= op.done:
                    pos = q
                    break
                q -= 1
            if pos == p and last_wait_pos in waits and last_wait_pos > op.pos and last_wait_pos > 0 \
                    and seq[last_wait_pos - 1].t + 4 >= op.done:
                pos = last_wait_pos
            tpos = seq[pos - 1].t + 4
            ci = 0 if c == 'l' else 1
            k = needs[c]
            while k < before[pos][ci] and ops[c][k].done + 16 <= tpos:
                k += 1
            N = before[pos][ci] - k
            assert N >= 0
            if N > mx[c]:
                N = mx[c]
                k = before[pos][ci] - N
            w = waits.setdefault(pos, {})
            w[c] = min(w.get(c, 99), N)
            guaranteed[c] = k
            last_wait_pos = max(last_wait_pos, pos)
    out = []
    for p, i in enumerate(seq):
        if p in waits:
            w = waits[p]
            t = "s_waitcnt"
            if 'v' in w:
                t += f" vmcnt({w['v']})"
            if 'l' in w:
                t += f" lgkmcnt({w['l']})"
            wi = Inst(t, WAIT, size=4)
            wi.idx = -1
            wi.t = i.t
            wi.tag = w
            out.append(wi)
        out.append(i)
    return out


def verify(seq, ins):
    seen = set()
    st = 0
    stpos = {}
    lq, vq, sq = [], [], []
    complete = set()
    for i in seq:
        if i.kind == WAIT:
            w = i.tag
            if 'l' in w:
                if sq:
                    assert w['l'] == 0
                    complete.update(sq)
                    sq = []
                while len(lq) > w['l']:
                    complete.add(lq.pop(0))
            if 'v' in w:
                while len(vq) > w['v']:
                    complete.add(vq.pop(0))
        if i.idx >= 0:
            for p, (lat, s) in i.preds.items():
                assert p in seen, (i.text, ins[p].text)
                assert st - stpos[p] - 1 >= s, (ins[p].text, i.text, s, st - stpos[p] - 1)
            for q in i.need:
                assert q in complete, (ins[q].text, i.text)
            seen.add(i.idx)
            stpos[i.idx] = st
            if i.kind in DS:
                lq.append(i.idx)
            elif i.kind in VM:
                vq.append(i.idx)
            elif i.kind == SMEM:
                sq.append(i.idx)
        if i.kind != FENCE:
            st += i.nst
    assert len(seen) == len(ins)


def simulate(seq):
    m = Model()
    lq, vq = [], []
    sdone = 0
    stall = 0
    for i in seq:
        t = m.earliest(i)
        if i.kind == WAIT:
            w = i.tag
            t0 = t
            if 'l' in w:
                t = max(t, sdone)
                if len(lq) > w['l']:
                    t = max(t, lq[len(lq) - w['l'] - 1])
            if 'v' in w and len(vq) > w['v']:
                t = max(t, vq[len(vq) - w['v'] - 1])
            stall += t - t0
        m.issue(i, t)
        if i.kind in DS:
            lq.append(i.done)
        elif i.kind in VM:
            vq.append(i.done)
        elif i.kind == SMEM:
            sdone = max(sdone, i.done)
    return max(m.t_v, m.pipe), stall


def emit_text(seq, start_off=0, annotate=False):
    seq = [i for i in seq if i.kind != FENCE]
    n = len(seq)
    INF = 1e18
    dp = [[INF, INF] for _ in range(n + 1)]
    ch = [[None, None] for _ in range(n + 1)]
    dp[0][(start_off // 4) % 2] = 0
    for k, i in enumerate(seq):
        for ph in (0, 1):
            if dp[k][ph] >= INF:
                continue
            opts = [4, 8] if i.flex else [i.size]
            for sz in opts:
                c = dp[k][ph] + (1.0 if (sz == 8 and ph == 1) else 0.0) + 0.001 * sz
                np_ = (ph + sz // 4) % 2
                if c < dp[k + 1][np_]:
                    dp[k + 1][np_] = c
                    ch[k + 1][np_] = (ph, sz)
    ph = 0 if dp[n][0] <= dp[n][1] else 1
    mis = int(dp[n][ph])
    sizes = [0] * n
    for k in range(n, 0, -1):
        p, sz = ch[k][ph]
        sizes[k - 1] = sz
        ph = p
    lines = []
    tot = 0
    for i, sz in zip(seq, sizes):
        t = i.text
        if i.flex:
            op, rest = t.split(' ', 1)
            t = f"{op}_e{32 if sz == 4 else 64} {rest}"
        if annotate:
            t = f"{t:<90s}; t={i.t} {i.tag if isinstance(i.tag, str) else ''}"
        lines.append(t)
        tot += sz
    return lines, tot, mis
```

```python
import sys, math, struct, argparse
sys.path.insert(0, 'gen')
import fw
from fw import *

KNAME = "standalone__window_attn_swin__vision_kernel"


def f2u(x):
    return struct.unpack('<I', struct.pack('<f', x))[0]


BUFSZ = 25600
BUF = [0, BUFSZ, 2 * BUFSZ]
WO = 3 * BUFSZ
BI = WO + 73728
LDS_TOTAL = BI + 4 * 3072
RING = BUF[2]
OP = 400

S = [0, 32]
QKP = 64
VF = 112
AQK = 144
SCR = 192
SP = 224
A32 = 240
A16 = 244
AOR, AOW, ABI, AWO = 246, 247, 248, 249
AST = 250
LF, MKS, MKD = 253, 254, 255
TM = [SP, SP + 4]
AW_QK = 0
AW_V = 144
OPB = [('a', 216 + 4 * i) for i in range(10)] + [('v', SP + 8), ('v', SP + 12)]

SX, SW, SWO, SR, SO = 20, 24, 28, 32, 36
SWAVE = 48
S_COL, S_ROW, S_ROWST, S_MX, S_MY = 50, 54, 58, 62, 66
S_C = 70
S_T = 72
S_LDSW = 86
S_XM = 87

XB = 19267584
ROWB = 86016
SCALE = 48 ** -0.5
CEXP = SCALE * math.log2(math.e)
NEGC = -100.0 * math.log2(math.e)


def v(i):
    return ('v', i)


def s(i):
    return ('s', i)


class Gen:
    def __init__(self, args):
        self.a = args
        self.p = Prog()
        self.opb = 0
        self.nopb = 10

    def buf(self):
        b = OPB[self.opb % self.nopb]
        self.opb += 1
        return b

    def setup(self, NW):
        p = self.p
        a = self.a
        LAT0 = a.lat0
        p.raw("s_load_dwordx8 s[4:11], s[0:1], 0", SMEM, R('s', 0, 2), R('s', 4, 8), size=8, lat=400)
        p.raw("s_load_dwordx2 s[12:13], s[0:1], 48", SMEM, R('s', 0, 2), R('s', 12, 2), size=8, lat=400)
        L = VF + 0
        WV = VF + 1
        T = [VF + 2 + i for i in range(8)]
        p.valu('v_and_b32', v(L), 63, v(0))
        p.valu('v_lshrrev_b32', v(WV), 6, v(0))
        p.valu('v_readfirstlane_b32', s(SWAVE), v(WV)).flex = False
        for w in range(NW):
            t0, t1, t2 = S_T, S_T + 1, S_T + 2
            p.salu('s_mul_i32', s(t0), s(2), 3, scc_w=False)
            p.salu('s_add_u32', s(t0), s(t0), w)
            p.salu('s_min_u32', s(t0), s(t0), 783)
            p.salu('s_mul_i32', s(t1), s(t0), 2341, scc_w=False)
            p.salu('s_lshr_b32', s(t1), s(t1), 16)
            p.salu('s_mul_i32', s(t2), s(t1), 28, scc_w=False)
            p.salu('s_sub_u32', s(t0), s(t0), s(t2))
            p.salu('s_cmp_eq_u32', None, s(t0), 27)
            p.salu('s_cselect_b32', s(S_MX + w), '1.0', 0, scc_w=False, scc_r=True)
            p.salu('s_cmp_eq_u32', None, s(t1), 27)
            p.salu('s_cselect_b32', s(S_MY + w), f2u(NEGC), 0, scc_w=False, scc_r=True)
            p.salu('s_mul_i32', s(t0), s(t0), 8 * 384, scc_w=False)
            p.salu('s_add_u32', s(S_COL + w), s(t0), 4 * 384)
            p.salu('s_lshl_b32', s(t1), s(t1), 3)
            p.salu('s_add_u32', s(t1), s(t1), 4)
            p.salu('s_lshl_b32', s(t2), s(SWAVE), 1)
            p.salu('s_add_u32', s(t2), s(t2), s(t1))
            p.salu('s_cmp_ge_u32', None, s(t2), 224)
            p.salu('s_cselect_b32', s(t0), 224, 0, scc_w=False, scc_r=True)
            p.salu('s_sub_u32', s(t2), s(t2), s(t0))
            p.salu('s_mul_i32', s(S_ROW + w), s(t2), ROWB, scc_w=False)
            p.salu('s_and_b32', s(t2), s(SWAVE), 1)
            p.salu('s_lshl_b32', s(t2), s(t2), 2)
            p.salu('s_add_u32', s(t2), s(t2), s(t1))
            p.salu('s_cmp_ge_u32', None, s(t2), 224)
            p.salu('s_cselect_b32', s(t0), 224, 0, scc_w=False, scc_r=True)
            p.salu('s_sub_u32', s(t2), s(t2), s(t0))
            p.salu('s_mul_i32', s(S_ROWST + w), s(t2), ROWB, scc_w=False)
        p.smov(s(S_C), f2u(CEXP))
        p.salu('s_mul_i32', s(S_LDSW), s(SWAVE), 24576, scc_w=False)
        p.salu('s_add_u32', s(S_LDSW), s(S_LDSW), RING)
        p.salu('s_mul_i32', s(S_XM), s(SWAVE), 6144, scc_w=False)
        XV = [SP + 8, SP + 9, SP + 10]
        self.XV = XV
        for q in range(3):
            pp, x, f, j = T[0], T[1], T[2], T[3]
            p.valu('v_add_u32', v(pp), 64 * q, v(L))
            p.valu('v_mul_u32_u24', v(x), 171, v(pp))
            p.valu('v_lshrrev_b32', v(x), 12, v(x))
            p.valu('v_mul_u32_u24', v(j), 24, v(x))
            p.valu('v_sub_u32', v(j), v(pp), v(j))
            p.valu('v_lshrrev_b32', v(f), 1, v(x))
            p.valu('v_and_b32', v(pp), 1, v(x))
            p.valu('v_lshl_or_b32', v(f), v(pp), 2, v(f), vop3=True)
            p.valu('v_xor_b32', v(j), v(j), v(f))
            p.valu('v_mul_u32_u24', v(x), 384, v(x))
            p.valu('v_lshl_add_u32', v(XV[q]), v(j), 4, v(x), vop3=True)
        for (srd, ptr, size) in ((SX, 4, XB), (SW, 6, 221184), (SWO, 8, 73728), (SR, 10, 1800), (SO, 12, XB)):
            p.smov(s(srd), s(ptr))
            p.smov(s(srd + 1), s(ptr + 1))
            p.smov(s(srd + 2), size)
            p.smov(s(srd + 3), 0x20000)
        RB = QKP
        p.valu('v_lshlrev_b32', v(T[4]), 3, v(L))
        p.valu('v_lshl_add_u32', v(T[4]), v(WV), 1, v(T[4]), vop3=True)
        self.xdma(0, LAT0)
        for q in range(4):
            p.vld('buffer_load_ushort', v(RB + q), 1, T[4], SR, 0, 512 * q, LAT0, occ=16)
        if NW > 1:
            self.xdma(1, LAT0)
        WQ = [VF + 10, VF + 11, VF + 12]
        WVV = [VF + 13, VF + 14, VF + 15]
        WOV = [SP + 11, SP + 12, SP + 13]
        self.WQ, self.WVV, self.WOV = WQ, WVV, WOV
        p.valu('v_mul_u32_u24', v(T[5]), 96, v(WV))
        for q in range(3):
            c, u, t, t2 = T[0], T[1], T[2], T[3]
            p.valu('v_add_u32', v(c), 64 * q, v(L))
            p.valu('v_mul_u32_u24', v(u), 171, v(c))
            p.valu('v_lshrrev_b32', v(u), 10, v(u))
            p.valu('v_lshl_add_u32', v(c), v(c), 4, v(T[5]), vop3=True)
            p.valu('v_mul_u32_u24', v(t), 1056, v(u))
            p.valu('v_add_u32', v(t), v(t), v(c))
            p.valu('v_add_u32', v(WVV[q]), 768, v(t))
            p.valu('v_lshrrev_b32', v(t), 1, v(u))
            p.valu('v_and_b32', v(t2), 1, v(u))
            p.valu('v_mul_u32_u24', v(t2), 288, v(t2))
            p.valu('v_add_u32', v(t2), v(t2), v(c))
            p.valu('v_mul_u32_u24', v(u), 960, v(t))
            p.valu('v_add_u32', v(WQ[q]), v(u), v(t2))
            p.valu('v_mul_u32_u24', v(u), 192, v(t))
            p.valu('v_sub_u32', v(c), v(c), v(T[5]))
            p.valu('v_add_u32', v(WOV[q]), v(u), v(c))
        l32, hh, l16, g, r4, c4 = T[0], T[1], T[2], T[3], T[6], T[7]
        U = [VF + 16 + i for i in range(8)]
        p.valu('v_and_b32', v(l32), 31, v(L))
        p.valu('v_lshrrev_b32', v(hh), 5, v(L))
        p.valu('v_and_b32', v(l16), 15, v(L))
        p.valu('v_lshrrev_b32', v(g), 4, v(L))
        p.valu('v_bfe_u32', v(r4), v(L), 2, 2, vop3=True)
        p.valu('v_and_b32', v(c4), 3, v(L))
        TRQ, TRV = VF + 24, VF + 25
        self.TRQ, self.TRV = TRQ, TRV
        p.valu('v_lshl_add_u32', v(U[0]), v(hh), 3, v(r4), vop3=True)
        p.valu('v_mul_u32_u24', v(U[0]), 192, v(U[0]))
        p.valu('v_and_b32', v(U[1]), 1, v(g))
        p.valu('v_lshlrev_b32', v(U[1]), 5, v(U[1]))
        p.valu('v_lshl_add_u32', v(U[2]), v(c4), 3, v(U[1]), vop3=True)
        p.valu('v_add3_u32', v(TRQ), v(U[0]), v(U[2]), s(S_LDSW), vop3=True)
        p.valu('v_lshl_add_u32', v(U[0]), v(g), 3, v(r4), vop3=True)
        p.valu('v_mul_u32_u24', v(U[0]), 96, v(U[0]))
        p.valu('v_lshl_add_u32', v(U[0]), v(c4), 3, v(U[0]), vop3=True)
        p.valu('v_add_u32', v(TRV), s(S_LDSW), v(U[0]))
        p.valu('v_lshl_add_u32', v(U[0]), v(hh), 2, v(r4), vop3=True)
        p.valu('v_mul_u32_u24', v(U[0]), 192, v(U[0]))
        p.valu('v_and_b32', v(U[2]), 1, v(c4))
        p.valu('v_lshlrev_b32', v(U[2]), 1, v(U[2]))
        p.valu('v_lshrrev_b32', v(U[3]), 1, v(c4))
        p.valu('v_or_b32', v(U[2]), v(U[2]), v(U[3]))
        p.valu('v_lshl_add_u32', v(U[2]), v(U[2]), 3, v(U[1]), vop3=True)
        p.valu('v_lshrrev_b32', v(U[3]), 1, v(WV))
        p.valu('v_mul_u32_u24', v(U[4]), 36864, v(U[3]))
        p.valu('v_add3_u32', v(U[0]), v(U[0]), v(U[2]), v(U[4]), vop3=True)
        p.valu('v_add_u32', v(AWO), WO, v(U[0]))

        def ftok(dst, t, tmp):
            p.valu('v_bfe_u32', v(dst), v(t), 1, 3, vop3=True)
            p.valu('v_and_b32', v(tmp), 1, v(t))
            p.valu('v_lshlrev_b32', v(tmp), 2, v(tmp))
            p.valu('v_xor_b32', v(dst), v(dst), v(tmp))
        ftok(U[0], l32, U[1])
        p.valu('v_xor_b32', v(U[0]), v(U[0]), v(hh))
        p.valu('v_mul_u32_u24', v(U[1]), 384, v(l32))
        for m in range(4):
            p.valu('v_xor_b32', v(U[2]), 2 * m, v(U[0]))
            p.valu('v_lshl_add_u32', v(A32 + m), v(U[2]), 4, v(U[1]), vop3=True)
        p.valu('v_and_b32', v(U[0]), 3, v(l16))
        p.valu('v_bfe_u32', v(U[1]), v(l16), 2, 1, vop3=True)
        p.valu('v_lshl_or_b32', v(U[0]), v(U[1]), 3, v(U[0]), vop3=True)
        p.valu('v_bfe_u32', v(U[1]), v(l16), 3, 1, vop3=True)
        p.valu('v_lshl_or_b32', v(U[0]), v(U[1]), 2, v(U[0]), vop3=True)
        ftok(U[1], U[0], U[2])
        p.valu('v_xor_b32', v(U[1]), v(U[1]), v(g))
        p.valu('v_mul_u32_u24', v(U[0]), 384, v(U[0]))
        for m in range(2):
            p.valu('v_xor_b32', v(U[2]), 4 * m, v(U[1]))
            p.valu('v_lshl_add_u32', v(A16 + m), v(U[2]), 4, v(U[0]), vop3=True)
        p.valu('v_mul_u32_u24', v(U[0]), OP, v(l32))
        p.valu('v_lshl_add_u32', v(U[0]), v(hh), 4, v(U[0]), vop3=True)
        p.valu('v_add_u32', v(AOW), v(U[0]), v(T[5]))
        p.valu('v_and_b32', v(U[1]), 1, v(WV))
        p.valu('v_mul_u32_u24', v(U[1]), 32 * OP, v(U[1]))
        p.valu('v_add_u32', v(AOR), v(U[0]), v(U[1]))
        xq, yr = U[5], U[6]
        p.valu('v_and_b32', v(xq), 7, v(L))
        p.valu('v_lshrrev_b32', v(yr), 3, v(l32))
        p.valu('v_mul_u32_u24', v(U[7]), 3072, v(WV))
        p.valu('v_add_u32', v(U[7]), BI, v(U[7]))
        p.valu('v_sub_u32', v(U[0]), 3, v(yr))
        p.valu('v_mul_u32_u24', v(U[0]), 192, v(U[0]))
        p.valu('v_sub_u32', v(U[1]), 7, v(xq))
        p.valu('v_lshl_add_u32', v(U[1]), v(hh), 2, v(U[1]), vop3=True)
        p.valu('v_lshl_add_u32', v(U[0]), v(U[1]), 4, v(U[0]), vop3=True)
        p.valu('v_add_u32', v(ABI), v(U[0]), v(U[7]))
        p.valu('v_lshrrev_b32', v(U[0]), 2, v(xq))
        p.valu('v_xor_b32', v(U[0]), v(U[0]), v(hh))
        p.valu('v_cvt_f32_u32', v(U[0]), v(U[0]))
        p.valu('v_mul_f32', v(LF), f2u(NEGC), v(U[0]))
        p.valu('v_mul_u32_u24', v(U[0]), 384, v(xq))
        p.valu('v_lshl_add_u32', v(U[0]), v(hh), 4, v(U[0]), vop3=True)
        p.valu('v_mul_u32_u24', v(U[1]), 192, v(U[3]))
        p.valu('v_add_u32', v(U[0]), v(U[0]), v(U[1]))
        p.valu('v_mul_u32_u24', v(U[1]), ROWB, v(yr))
        for w in range(NW):
            p.valu('v_add_u32', v(U[2]), s(S_COL + w), v(U[0]))
            p.valu('v_subrev_u32', v(U[4]), ROWB, v(U[2]))
            p.valu('v_min_u32', v(U[2]), v(U[2]), v(U[4]))
            p.valu('v_add_u32', v(AST + w), v(U[2]), v(U[1]))
        HB = U[7]
        p.valu('v_sub_u32', v(U[0]), 63, v(L))
        p.valu('v_lshl_add_u32', v(U[0]), v(U[0]), 2, v(HB), vop3=True)
        for q in range(4):
            p.valu('v_lshlrev_b32', v(RB + q), 16, v(RB + q))
            p.valu('v_mul_f32', v(RB + q), f2u(48 ** 0.5), v(RB + q))
            p.dsw('ds_write_b32', U[0], RB + q, 1, 256 * (3 - q), ['BIAS'], 8)
        BT = QKP + 4
        for q in range(3):
            e, dy = U[1], U[2]
            p.valu('v_add_u32', v(e), 64 * q, v(L))
            p.valu('v_mul_u32_u24', v(dy), 171, v(e))
            p.valu('v_lshrrev_b32', v(dy), 11, v(dy))
            p.valu('v_mul_u32_u24', v(dy), 3, v(dy))
            p.valu('v_add_u32', v(e), v(e), v(dy))
            p.valu('v_lshl_add_u32', v(e), v(e), 2, v(HB), vop3=True)
            for k in range(2):
                p.add(Inst(f"ds_read2_b32 v[{BT+4*q+2*k}:{BT+4*q+2*k+1}], v{e} offset0:{31+2*k} offset1:{32+2*k}", DSR,
                           [v(e)], R('v', BT + 4 * q + 2 * k, 2), tok=[('BIAS', 'r')], occ=16, lat=P['ds_lat']))
        p.valu('v_lshl_add_u32', v(U[0]), v(L), 4, v(HB), vop3=True)
        for q in range(3):
            p.dsw('ds_write_b128', U[0], BT + 4 * q, 4, 1024 * q, ['BIAS'], 52)

    def xdma(self, w, lat):
        p = self.p
        b = self.xbuf(w)
        ta, tb = SP + 14, SP + 15
        st = S_T + 4
        p.salu('s_add_u32', s(st), s(S_ROW + w), ROWB)
        for q in range(3):
            p.valu('v_add_u32', v(ta), s(S_COL + w), v(self.XV[q]))
            p.valu('v_subrev_u32', v(tb), ROWB, v(ta))
            p.valu('v_min_u32', v(ta), v(ta), v(tb))
            p.valu('v_xor_b32', v(tb), 64, v(ta))
            p.salu('s_add_u32', 'm0', s(S_XM), BUF[b] + 1024 * q)
            p.dma(ta, SX, s(S_ROW + w), [f'BUF{b}'], lat, tag=f'X{w}')
            p.salu('s_add_u32', 'm0', s(S_XM), BUF[b] + 3072 + 1024 * q)
            p.dma(tb, SX, s(st), [f'BUF{b}'], lat, tag=f'X{w}')

    def xbuf(self, w):
        return [0, 1, 0][w]

    def obuf(self, w):
        return [2, 1, 0][w]

    def wunit_dma(self, u):
        p = self.p
        gi, k = divmod(u, 3)
        slot = u % 8
        st = S_T + 5
        row = 16 * (2 * gi + k) if k < 2 else 32 * gi
        p.smov(s(st), row * 1152)
        for q in range(3):
            p.salu('s_add_u32', 'm0', s(S_LDSW), slot * 3072 + 1024 * q)
            p.dma(self.WQ[q] if k < 2 else self.WVV[q], SW, s(st), [f'RS{slot}', 'RINGW'], self.a.latw, tag=f'W{u}')

    def wunit_tr(self, u):
        p = self.p
        gi, k = divmod(u, 3)
        slot = u % 8
        for a in range(3):
            for e in range(2):
                if k < 2:
                    sidx = 2 * gi + k
                    p.ds_tr(('a', AW_QK + (sidx * 3 + a) * 4 + 2 * e), self.TRQ, slot * 3072 + 768 * e + 64 * a,
                            [f'RS{slot}', 'RINGR'])
                else:
                    p.ds_tr(('a', AW_V + (gi * 3 + a) * 4 + 2 * e), self.TRV, slot * 3072 + 384 * e + 32 * a,
                            [f'RS{slot}', 'RINGR'])

    def x32(self, w, t, sidx):
        b = self.buf()
        xb = self.xbuf(w)
        self.p.ds_b128(b, A32 + sidx % 4, BUF[xb] + 12288 * t + 128 * (sidx // 4), [f'BUF{xb}'])
        return b

    def x16(self, w, tt, sp):
        b = self.buf()
        xb = self.xbuf(w)
        self.p.ds_b128(b, A16 + sp % 2, BUF[xb] + 6144 * tt + 128 * (sp // 2), [f'BUF{xb}'])
        return b

    def qk_step(self, w, t, sidx, acc):
        b = self.x32(w, t, sidx)
        for a in range(3):
            self.p.mfma32(acc + 16 * a, ('a', AW_QK + (sidx * 3 + a) * 4), b, None if sidx == 0 else 'd', tag=f'QK{w}.{t}')

    def v_step(self, w, tt, sp, acc):
        b = self.x16(w, tt, sp)
        for dt in range(3):
            self.p.mfma16(acc[dt], b, ('a', AW_V + (sp * 3 + dt) * 4), None if sp == 0 else 'd', tag=f'V{w}.{tt}')

    def qk_cvt(self, t, acc):
        for G in range(6):
            for i in range(4):
                src = acc + 8 * G + 2 * i
                self.p.cvt(QKP + 24 * t + 4 * G + i, src, src + 1)

    def v_cvt(self, tt, acc):
        p = self.p
        r = VF + 8 * tt
        p.cvt(r + 0, acc[0], acc[0] + 1)
        p.cvt(r + 1, acc[0] + 2, acc[0] + 3)
        p.cvt(r + 2, acc[1], acc[1] + 1)
        p.cvt(r + 3, acc[1] + 2, acc[1] + 3)
        p.cvt(r + 4, acc[2], acc[2] + 1)
        p.cvt(r + 5, acc[2] + 2, acc[2] + 3)
        p.valu('v_mov_b32', v(r + 6), 0x3f803f80)
        p.valu('v_mov_b32', v(r + 7), 0x3f803f80)
        p.swap16(r + 0, r + 2)
        p.swap16(r + 1, r + 3)
        p.swap16(r + 4, r + 6)
        p.swap16(r + 5, r + 7)

    def qkv0(self):
        p = self.p
        accq = [AQK, S[0]]
        accv = [[SCR + 12 * tt + 4 * d if 12 * tt + 4 * d < 32 else S[0] + 48 + (12 * tt + 4 * d - 32) for d in range(3)]
                for tt in range(4)]
        for u in range(8):
            self.wunit_dma(u)
        p.barrier(['BUF0'], tag='B-2')
        nv_defer = self.a.vdefer
        pend = []
        for gi in range(6):
            for k in range(3):
                u = 3 * gi + k
                self.wunit_tr(u)
                if u + 8 < 18:
                    self.wunit_dma(u + 8)
                if k < 2:
                    for t in range(2):
                        self.qk_step(0, t, 2 * gi + k, accq[t])
                else:
                    if gi >= 6 - nv_defer:
                        pend.append(gi)
                    else:
                        for tt in range(4):
                            self.v_step(0, tt, gi, accv[tt])
        for t in range(2):
            self.qk_cvt(t, accq[t])
        for tt in (3, 2, 0, 1):
            for gi in pend:
                self.v_step(0, tt, gi, accv[tt])
            self.v_cvt(tt, accv[tt])

    def wo_dma(self):
        p = self.p
        st = S_T + 6
        sb = S_T + 7
        sm = S_T + 8
        p.salu('s_lshr_b32', s(sb), s(SWAVE), 1)
        p.salu('s_mul_i32', s(sb), s(sb), 192, scc_w=False)
        p.salu('s_and_b32', s(st), s(SWAVE), 1)
        p.salu('s_mul_i32', s(st), s(st), 6 * 16 * 384, scc_w=False)
        p.salu('s_add_u32', s(sb), s(sb), s(st))
        p.salu('s_mul_i32', s(sm), s(SWAVE), 6 * 3072, scc_w=False)
        for i in range(6):
            p.salu('s_add_u32', s(st), s(sb), i * 16 * 384)
            for q in range(3):
                p.salu('s_add_u32', 'm0', s(sm), WO + i * 3072 + 1024 * q)
                p.dma(self.WOV[q], SWO, s(st), ['WO'], self.a.latw, tag='WO')

    def s_phase(self, w):
        p = self.p
        p.valu('v_mul_f32', v(MKS), s(S_MX + w), v(LF))
        p.valu('v_min_f32', v(MKD), s(S_MY + w), v(MKS))
        for tq in range(2):
            for tk in range(2):
                d = S[tq] + 16 * tk
                for q in range(4):
                    p.ds_b128(('v', d + 4 * q), ABI, (4 - 4 * tq + 4 * tk + q) * 192, ['BIAS'])
                for dg in range(3):
                    p.mfma32(d, ('v', QKP + 24 * tk + 4 * (3 + dg)), ('v', QKP + 24 * tq + 4 * dg), 'd', tag=f'S{w}.{tq}')

    def softmax(self, w, tq):
        p = self.p
        b = S[tq]
        t0, t1, o0, o1 = TM[tq], TM[tq] + 1, TM[tq] + 2, TM[tq] + 3
        tt = [t0, t1]
        for k in range(8):
            for tk in range(2):
                d = b + 16 * tk
                if k == 0:
                    p.valu('v_max3_f32', v(tt[tk]), v(d), v(d + 1), v(d + 2), vop3=True)
                elif k < 7:
                    p.valu('v_max3_f32', v(tt[tk]), v(tt[tk]), v(d + 2 * k + 1), v(d + 2 * k + 2), vop3=True)
                else:
                    p.valu('v_max_f32', v(tt[tk]), v(tt[tk]), v(d + 15))
        mk = [MKS if tk == tq else MKD for tk in range(2)]
        p.valu('v_fma_f32', v(t0), v(t0), s(S_C), v(mk[0]), vop3=True)
        p.valu('v_fma_f32', v(t1), v(t1), s(S_C), v(mk[1]), vop3=True)
        p.valu('v_max_f32', v(t0), v(t0), v(t1))
        p.valu('v_mov_b32', v(t1), v(t0))
        p.swap32(t0, t1)
        p.valu('v_max_f32', v(t0), v(t0), v(t1))
        p.valu('v_sub_f32', v(o0), v(mk[0]), v(t0))
        p.valu('v_sub_f32', v(o1), v(mk[1]), v(t0))
        off = [o0, o1]
        for i in range(0, 32, 2):
            for j in (i, i + 1):
                p.valu('v_fma_f32', v(b + j), v(b + j), s(S_C), v(off[j // 16]), vop3=True)
            for j in (i, i + 1):
                p.valu('v_exp_f32', v(b + j), v(b + j), kind=TRANS)
            p.cvt(b + i // 2, b + i, b + i + 1)

    def pv(self, w, tq):
        acc = SCR if tq == 0 else S[0]
        for ks in range(4):
            for dT in (1, 0):
                self.p.mfma32(acc + 16 * dT, ('v', VF + 8 * ks + 4 * dT), ('v', S[tq] + 4 * ks), None if ks == 0 else 'd',
                              tag=f'PV{w}.{tq}')

    def norm(self, w, tq):
        p = self.p
        acc = SCR if tq == 0 else S[0]
        ri = TM[tq]
        ob = self.obuf(w)
        p.valu('v_rcp_f32', v(ri), v(acc + 24), kind=TRANS)
        for a in (2, 0, 1):
            for i in range(8):
                p.valu('v_mul_f32', v(acc + 8 * a + i), v(ri), v(acc + 8 * a + i))
            for i in range(4):
                p.cvt(acc + 8 * a + i, acc + 8 * a + 2 * i, acc + 8 * a + 2 * i + 1)
            p.dsw('ds_write_b128', AOW, acc + 8 * a, 4, BUF[ob] + 32 * OP * tq + 32 * a, [f'BUF{ob}'], 52)

    def qk(self, w, t):
        for sidx in range(12):
            self.qk_step(w, t, sidx, AQK)
        self.qk_cvt(t, AQK)

    def vproj(self, w):
        for tt in range(4):
            base = SCR + 12 * tt if tt < 2 else AQK + 12 * (tt - 2)
            acc = [base, base + 4, base + 8]
            for sp in range(6):
                self.v_step(w, tt, sp, acc)
            self.v_cvt(tt, acc)

    def proj(self, w):
        p = self.p
        ob = self.obuf(w)
        Y = QKP
        self.nopb = 12
        for sidx in range(12):
            b = self.buf()
            p.ds_b128(b, AOR, BUF[ob] + 32 * sidx, [f'BUF{ob}'])
            for nt in range(3):
                wb = self.buf()
                for e in range(2):
                    p.ds_tr((wb[0], wb[1] + 2 * e), AWO, (16 * sidx + 8 * e) * 192 + 64 * nt, ['WO'])
                p.mfma32(Y + 16 * nt, wb, b, None if sidx == 0 else 'd', tag=f'PJ{w}')
        for nt in range(3):
            for a in range(2):
                base = Y + 16 * nt + 8 * a
                for i in range(4):
                    p.cvt(base + i, base + 2 * i, base + 2 * i + 1)
                p.vst('buffer_store_dwordx4', base, 4, AST + w, SO, s(S_ROWST + w), (32 * nt + 16 * a) * 2,
                      flags=self.a.stflags)

    def build(self):
        p = self.p
        NW = 3
        self.setup(NW)
        self.qkv0()
        p.barrier(['BUF0', 'BUF1', 'BUF2', 'WO', 'RINGR', 'RINGW'], tag='B-1')
        self.wo_dma()
        self.xdma(2, 2500)
        for w in range(NW):
            self.s_phase(w)
            if w > 0:
                self.proj(w - 1)
            self.softmax(w, 0)
            if w + 1 < NW:
                self.qk(w + 1, 0)
            self.pv(w, 0)
            self.softmax(w, 1)
            self.norm(w, 0)
            if w + 1 < NW:
                self.qk(w + 1, 1)
            self.pv(w, 1)
            self.norm(w, 1)
            if w + 1 < NW:
                self.vproj(w + 1)
            p.barrier(['BUF0', 'BUF1', 'BUF2', 'WO'], tag=f'B{w}')
        self.proj(NW - 1)


HEADER = """; Kernarg layout for this problem (72 bytes, ptrs only, base s[0:1]):
; @launch grid=({grid},1,1) block=(256,1,1) lds={lds}
.amdgcn_target "amdgcn-amd-amdhsa--gfx950"
.text
.globl {k}
.p2align 8
.type {k},@function
{k}:
s_cmp_ge_u32 s2, {grid}
s_cbranch_scc0 L_go
s_endpgm
L_go:
"""
FOOTER = """s_endpgm
.section .rodata,"a"
.p2align 6
.amdhsa_kernel {k}
  .amdhsa_next_free_vgpr 512
  .amdhsa_next_free_sgpr 102
  .amdhsa_accum_offset 256
  .amdhsa_group_segment_fixed_size 0
  .amdhsa_kernarg_size 72
  .amdhsa_user_sgpr_count 2
  .amdhsa_user_sgpr_kernarg_segment_ptr 1
  .amdhsa_system_sgpr_workgroup_id_x 1
.end_amdhsa_kernel
"""


def main():
    ap = argparse.ArgumentParser()
    ap.add_argument('-o', default='standalone__window_attn_swin__vision.s')
    ap.add_argument('--nosched', action='store_true')
    ap.add_argument('--annotate', action='store_true')
    ap.add_argument('--lat0', type=int, default=3000)
    ap.add_argument('--latw', type=int, default=600)
    ap.add_argument('--vdefer', type=int, default=2)
    ap.add_argument('--stflags', default='')
    ap.add_argument('--grid', type=int, default=262)
    ap.add_argument('--ds_lat', type=int, default=112)
    ap.add_argument('--ds_slack', type=int, default=40)
    a = ap.parse_args()
    fw.P['ds_lat'] = a.ds_lat
    fw.P['ds_slack'] = a.ds_slack
    g = Gen(a)
    g.build()
    ins = g.p.ins
    seq, m = schedule(ins, reorder=not a.nosched)
    seq = insert_waits(seq, ins)
    verify(seq, ins)
    tend, stall = simulate(seq)
    lines, nbytes, mis = emit_text(seq, start_off=16, annotate=a.annotate)
    from collections import Counter
    cnt = Counter(i.kind for i in seq)
    print(f"instr {len(seq)} bytes {nbytes} misaligned {mis} model cycles {tend} wait-stall {stall}", file=sys.stderr)
    print(dict(cnt), file=sys.stderr)
    txt = HEADER.format(grid=a.grid, lds=LDS_TOTAL, k=KNAME) + "\n".join(lines) + "\n" + FOOTER.format(k=KNAME)
    open(a.o, 'w').write(txt)


if __name__ == '__main__':
    main()
```
